```python
import torch

def _softmax(x, axis=-1):
    return torch.softmax(x, dim=axis)
def _gelu(x):
    return torch.nn.functional.gelu(x, approximate="tanh")
def _silu(x):
    return torch.nn.functional.silu(x)
def _sigmoid(x):
    return torch.sigmoid(x)
def _layernorm(x, axis=-1, eps=1e-5):
    m = x.mean(dim=axis, keepdim=True)
    v = x.var(dim=axis, keepdim=True, unbiased=False)
    return (x - m) / torch.sqrt(v + eps)
def _scatter_add(tgt, idx, src, axis=0):
    return tgt.clone().index_add_(axis, idx, src)
def _segment_sum(src, seg, n):
    out = torch.zeros((n,) + src.shape[1:], dtype=src.dtype)
    return out.index_add_(0, seg, src)
def _pad(x, pw):
    flat = tuple(v for pair in reversed(pw) for v in pair)
    return torch.nn.functional.pad(x, flat)

kernel_name = 'recurrent_scan__sliding_block_cached__glu_gated_glu__prompt'

def setup_inputs():

    _w = (lambda a: (lambda t: t.to(torch.bfloat16) if t.is_floating_point() else t)(torch.as_tensor(a)))
    def _A_setup():
        B, Sq, D = 1, 2048, 512
        Hq, Hkv, Sk, Dh = 32, 8, 2048, 128
        assert Hq % Hkv == 0, (Hq, Hkv)
        return {
            "x": _w((lambda *s: torch.randn(*s, dtype=torch.bfloat16) * 0.05)(B, Sq, D)),
            "k_cache": _w((lambda *s: torch.randn(*s, dtype=torch.bfloat16) * 0.8)(B, Hkv, Sk, Dh)),
            "v_cache": _w((lambda *s: torch.randn(*s, dtype=torch.bfloat16) * 0.2)(B, Hkv, Sk, Dh)),
            "wq": _w((lambda *s: torch.randn(*s, dtype=torch.bfloat16) * 0.8)(D, Hq * Dh) * (D ** -0.5)),
            "wo": _w((lambda *s: torch.randn(*s, dtype=torch.bfloat16) * 0.2)(Hq * Dh, D) * ((Hq * Dh) ** -0.5)),
        }
    _A_in = _A_setup()

    def _B_setup():
        B, S, D, F = 1, 2048, 512, 1792
        return {
            "x": _w((lambda *s: torch.randn(*s, dtype=torch.bfloat16) * 0.05)(B, S, D)),
            "w_gate": _w((lambda *s: torch.randn(*s, dtype=torch.bfloat16) * 0.2)(D, F)),
            "w_up": _w((lambda *s: torch.randn(*s, dtype=torch.bfloat16) * 0.1)(D, F)),
            "w_down": _w((lambda *s: torch.randn(*s, dtype=torch.bfloat16) * 0.1)(F, D)),
        }
    _B_in = _B_setup()

    return {
        "A_x": _A_in["x"],
        "A_k_cache": _A_in["k_cache"],
        "A_v_cache": _A_in["v_cache"],
        "A_wq": _A_in["wq"],
        "A_wo": _A_in["wo"],
        "B_x": _B_in["x"],
        "B_w_gate": _B_in["w_gate"],
        "B_w_up": _B_in["w_up"],
        "B_w_down": _B_in["w_down"],
    }

def reference(A_x, A_k_cache, A_v_cache, A_wq, A_wo, B_x, B_w_gate, B_w_up, B_w_down):
    def _A_ref(x, k_cache, v_cache, wq, wo):
        B, Sq, D = x.shape
        Hq, Dh = 32, 128
        Hkv, Sk = k_cache.shape[1], k_cache.shape[2]
        W = min(4096, max(256, Sk // 4))
        rep = Hq // Hkv
        q = (lambda x, *d: x.permute(*d))((x @ wq).reshape(B, Sq, Hq, Dh), 0, 2, 1, 3)
        k = (lambda x, n, axis: torch.repeat_interleave(x, n, dim=axis))(k_cache[:, :, Sk - W:, :], rep, axis=1)
        v = (lambda x, n, axis: torch.repeat_interleave(x, n, dim=axis))(v_cache[:, :, Sk - W:, :], rep, axis=1)
        scores = torch.einsum("bhqd,bhkd->bhqk", q, k) * (Dh ** -0.5)
        p = _softmax(scores, axis=-1)
        o = torch.einsum("bhqk,bhkd->bhqd", p, v)
        return (lambda x, *d: x.permute(*d))(o, 0, 2, 1, 3).reshape(B, Sq, Hq * Dh) @ wo

    def _B_ref(x, w_gate, w_up, w_down):
        g = torch.einsum("bsd,df->bsf", x, w_gate)
        u = torch.einsum("bsd,df->bsf", x, w_up)
        h = _sigmoid(g) * u
        return torch.einsum("bsf,fd->bsd", h, w_down)

    x = A_x
    xn = _layernorm(x, axis=-1)
    s = _A_ref(xn, A_k_cache, A_v_cache, A_wq, A_wo)
    g = _silu(_B_ref(xn, B_w_gate, B_w_up, B_w_down))
    return x + s * g
```

```python
import sys
def gen(NW=4, NM=8, ND=4, NT=8, NB=2, DEPTH=12, RING=16384, PASSES=4, NV=0, lds=163840, stride=8192, nvgpr=512, spread=True):
    o = []
    A = o.append
    A(f"; @launch grid=(256,1,1) block=({NW*64},1,1) lds={lds}")
    A('.amdgcn_target "amdgcn-amd-amdhsa--gfx950"')
    A(".text\n.globl mb_kernel\n.p2align 8\n.type mb_kernel,@function\nmb_kernel:")
    A("s_load_dwordx4 s[4:7], s[0:1], 0")
    A("v_lshrrev_b32 v1, 6, v0")
    A("s_nop 1")
    A("v_readfirstlane_b32 s20, v1")
    A("v_and_b32 v2, 63, v0  ; lane")
    A("s_waitcnt lgkmcnt(0)")
    A("s_mov_b32 s8, s4\ns_mov_b32 s9, s5\ns_mov_b32 s10, 0x4000000\ns_mov_b32 s11, 0x20000")
    A("s_mov_b32 s12, s6\ns_mov_b32 s13, s7\ns_mov_b32 s14, 0x100000\ns_mov_b32 s15, 0x20000")
    A("v_lshrrev_b32 v3, 4, v2")
    A(f"s_mov_b32 s21, {stride}")
    A("v_mul_lo_u32 v3, v3, s21")
    A("v_and_b32 v4, 15, v2")
    A("v_lshlrev_b32 v4, 4, v4")
    A("v_add_u32 v3, v3, v4")
    A("s_and_b32 s22, s2, 7")
    A(f"s_mul_i32 s22, s22, {NW*256}")
    A("s_lshl_b32 s23, s20, 8")
    A("s_add_u32 s22, s22, s23")
    A("v_add_u32 v3, s22, v3")
    for j in range(4):
        A(f"v_add_u32 v{10+j}, {j*(4*stride-1024)}, v3")
    A(f"s_mul_i32 s24, s20, {RING}")
    A("v_lshlrev_b32 v5, 3, v2")
    A("v_add_u32 v5, s24, v5")
    A("v_lshlrev_b32 v6, 4, v2")
    A(f"v_add_u32 v6, {NW*RING}, v6")
    for i in range(16, 64):
        A(f"v_mov_b32 v{i}, 0")
    for i in range(0, 128):
        A(f"v_accvgpr_write_b32 a{i}, 0")
    nslots = RING // 4096
    iters_per_pass = 128 // 4
    A("s_mov_b32 s30, 0  ; pass")
    A("s_memtime s[40:41]")
    A("s_memrealtime s[46:47]")
    A("s_waitcnt lgkmcnt(0)")
    A("Lpass:")
    A("s_mov_b32 s25, 0  ; soffset")
    A("s_mov_b32 s26, 0")
    A("s_mov_b32 s27, 0  ; iter")
    A("Lloop:")
    A("s_add_u32 s28, s24, s26")
    A("s_mov_b32 m0, s28")
    body = []
    mf = []
    for m in range(NM):
        acc = (m % 8) * 16
        mf.append(f"v_mfma_f32_32x32x16_bf16 a[{acc}:{acc+15}], v[{16+4*(m%4)}:{19+4*(m%4)}], v[{32+4*(m%2)}:{35+4*(m%2)}], a[{acc}:{acc+15}]")
    others = []
    for j in range(ND):
        others.append(f"buffer_load_dwordx4 v{10+j%4}, s[8:11], s25 offen offset:{1024*(j%4)} lds")
    reads = []
    for j in range(NT):
        reads.append(f"ds_read_b64_tr_b16 v[{40+2*(j%8)}:{41+2*(j%8)}], v5 offset:{512*j}")
    for j in range(NB):
        reads.append(f"ds_read_b128 v[{56+4*(j%2)}:{59+4*(j%2)}], v6 offset:{1024*j}")
    if NM > 0:
        slots = [[] for _ in range(NM)]
        for j, x in enumerate(others):
            slots[(j * NM) // max(len(others),1) if spread else 0].append(x)
        for j, x in enumerate(reads):
            slots[(j * NM) // len(reads)].append(x)
        for m in range(NM):
            body.append(mf[m])
            body += slots[m]
            for q in range(NV):
                body.append(f"v_add_f32 v{64+q}, v{64+q}, v{70+q}")
    else:
        body = others + reads
    for x in body: A(x)
    A(f"s_waitcnt vmcnt({DEPTH})")
    if NT + NB > 0:
        A("s_waitcnt lgkmcnt(4)")
    A(f"s_add_u32 s25, s25, {16*stride}")
    A("s_add_u32 s26, s26, 4096")
    A(f"s_cmp_ge_u32 s26, {RING}")
    A("s_cselect_b32 s26, 0, s26")
    A("s_add_u32 s27, s27, 1")
    A(f"s_cmp_lt_u32 s27, {iters_per_pass}")
    A("s_cbranch_scc1 Lloop")
    A("s_cmp_lg_u32 s30, 0")
    A("s_cbranch_scc1 Lskip")
    A("s_memtime s[42:43]")
    A("s_waitcnt lgkmcnt(0)")
    A("Lskip:")
    A("s_add_u32 s30, s30, 1")
    A(f"s_cmp_lt_u32 s30, {PASSES}")
    A("s_cbranch_scc1 Lpass")
    A("s_waitcnt vmcnt(0)")
    A("s_memtime s[44:45]")
    A("s_memrealtime s[48:49]")
    A("s_waitcnt lgkmcnt(0)")
    A("s_sub_u32 s50, s42, s40")
    A("s_sub_u32 s51, s44, s42")
    A("s_sub_u32 s52, s48, s46")
    A("v_mov_b32 v20, s50\nv_mov_b32 v21, s51\nv_mov_b32 v22, s52\nv_mov_b32 v23, 0")
    A(f"s_mul_i32 s53, s2, {NW}")
    A("s_add_u32 s53, s53, s20")
    A("s_lshl_b32 s53, s53, 5")
    A("v_mov_b32 v24, s53")
    A("v_cmp_eq_u32 vcc, 0, v2")
    A("s_and_saveexec_b64 s[54:55], vcc")
    A("buffer_store_dwordx4 v[20:23], v24, s[12:15], 0 offen")
    A("s_waitcnt vmcnt(0)")
    A("s_endpgm")
    A('.section .rodata,"a"\n.p2align 6\n.amdhsa_kernel mb_kernel')
    A(f"  .amdhsa_next_free_vgpr {nvgpr}\n  .amdhsa_next_free_sgpr 64\n  .amdhsa_accum_offset {nvgpr//2}")
    A("  .amdhsa_group_segment_fixed_size 0\n  .amdhsa_kernarg_size 16\n  .amdhsa_user_sgpr_count 2\n  .amdhsa_user_sgpr_kernarg_segment_ptr 1\n  .amdhsa_system_sgpr_workgroup_id_x 1\n.end_amdhsa_kernel")
    return "\n".join(o) + "\n"

if __name__ == "__main__":
    cfgs = {
      "a_dma_only_d12": dict(NM=0, NT=0, NB=0, DEPTH=12, RING=16384),
      "b_dma_only_d20": dict(NM=0, NT=0, NB=0, DEPTH=20, RING=24576),
      "c_mfma_only": dict(ND=0, NT=0, NB=0),
      "d_mfma_dma_d12": dict(NT=0, NB=0, DEPTH=12),
      "e_full_d12": dict(DEPTH=12),
      "f_full_d20": dict(DEPTH=20, RING=24576),
      "g_mfma_reads": dict(ND=0),
      "h_dma8w_d12": dict(NW=8, NM=0, NT=0, NB=0, DEPTH=12, RING=16384, nvgpr=256),
      "i_full_d8": dict(DEPTH=8),
    }
    for n, c in cfgs.items():
        open(f"mb_{n}.s", "w").write(gen(**c))
```

```python
from gen_mb1 import gen
import re
def mk(nm_total, loop_body, fill=4, prefetch=False):
    s = gen(ND=0, NT=0, NB=0, NM=1, PASSES=1)
    body = []
    for m in range(loop_body):
        acc = (m % 8) * 16
        body.append(f"v_mfma_f32_32x32x16_bf16 a[{acc}:{acc+15}], v[{16+4*(m%4)}:{19+4*(m%4)}], v[{32+4*(m%2)}:{35+4*(m%2)}], a[{acc}:{acc+15}]")
        for q in range(fill):
            body.append(f"v_add3_u32 v{64+q}, v{64+q}, v{70+q}, v{71+q}")
    s = re.sub(r"v_mfma_f32_32x32x16_bf16 [^\n]*", "\n".join(body), s, count=1)
    s = s.replace("s_cmp_lt_u32 s27, 32", f"s_cmp_lt_u32 s27, {nm_total//loop_body}")
    if prefetch:
        nbytes = loop_body * (8 + 8 * fill)
        n = (nbytes + 4095) // 4096
        pf = "s_getpc_b64 s[56:57]\nv_lshlrev_b32 v7, 4, v0\n"
        for i in range(n):
            pf += f"global_load_dwordx4 v[80:83], v7, s[56:57]\ns_add_u32 s56, s56, 4096\ns_addc_u32 s57, s57, 0\n"
        s = s.replace("s_mov_b32 s30, 0  ; pass", pf + "s_mov_b32 s30, 0  ; pass")
    return s
open("mb_x_straight.s", "w").write(mk(1536, 1536))
open("mb_x_loop.s", "w").write(mk(1536, 64))
open("mb_x_straight_pf.s", "w").write(mk(1536, 1536, prefetch=True))
open("mb_x_mid.s", "w").write(mk(1536, 512))
```

```python
from gen_mb1 import gen
import re
def mk(pattern, waddr, wop="b128", stride=1024):
    s = gen(ND=0, NT=0, NB=0, NM=1, PASSES=4, stride=stride).replace("s_mul_i32 s22, s22, 1024", "s_mul_i32 s22, s22, 0x80000")
    setup = """
v_and_b32 v8, 31, v2
v_lshrrev_b32 v9, 5, v2
v_and_b32 v14, 15, v2
v_xor_b32 v14, v14, v9
v_lshlrev_b32 v14, 4, v14
v_lshl_add_u32 v8, v8, 10, v14
s_lshl_b32 s33, s20, 8
v_add_u32 v8, s33, v8
v_add_u32 v8, 65536, v8
v_lshlrev_b32 v9, 4, v0
v_add_u32 v9, 65536, v9
"""
    s = s.replace("s_mov_b32 s30, 0  ; pass", setup + "s_mov_b32 s30, 0  ; pass")
    body = []
    for st in range(8):
        slot = st % 4
        tr = lambda j: f"ds_read_b64_tr_b16 v[{96+2*j+16*(st%2)}:{97+2*j+16*(st%2)}], v5 offset:{512*j+4096*slot}"
        b128 = lambda j: f"ds_read_b128 v[{56+4*j}:{59+4*j}], v6 offset:{1024*j}"
        dma = lambda j: f"buffer_load_dwordx4 v{10+j}, s[8:11], s25 offen offset:{1024*j} lds"
        fx = {g: [] for g in range(8)}
        if "r" in pattern:
            fx[0] += ["v_xor_b32 v7, 32, v6", tr(0), tr(1)]; fx[1] += [b128(0), b128(1)]; fx[2] += [tr(2), tr(3)]; fx[3] += [tr(4), tr(5)]; fx[4] += [tr(6), tr(7)]
        if "d" in pattern:
            fx[0] += [f"s_add_u32 m0, s24, {4096*slot}", f"s_add_u32 s25, s25, 0x4000", "s_and_b32 s25, s25, 0x7ffff"]
            fx[1] += [dma(0)]; fx[3] += [dma(1)]; fx[5] += [dma(2)]; fx[7] += [dma(3)]
        if "w" in pattern:
            if wop == "b128":
                fx[6] += [f"ds_write_b128 {waddr}, v[80:83]"]
            else:
                fx[6] += [f"ds_write_b64 {waddr}, v[80:81]", f"ds_write_b64 {waddr}, v[82:83] offset:8"]
        body.append(f"s_waitcnt vmcnt(8) lgkmcnt({(1 if wop == 'b128' else 2) if 'w' in pattern else 0})")
        for g in range(8):
            acc = g * 16
            body.append(f"v_mfma_f32_32x32x16_bf16 a[{acc}:{acc+15}], v[{16+4*(g//2)}:{19+4*(g//2)}], v[{32+4*(g%2)}:{35+4*(g%2)}], a[{acc}:{acc+15}]")
            body += fx[g]
    s = re.sub(r"v_mfma_f32_32x32x16_bf16 [^\n]*", "\n".join(body), s, count=1)
    s = s.replace("s_cmp_lt_u32 s27, 32", "s_cmp_lt_u32 s27, 4").replace(f"s_add_u32 s25, s25, {16*stride}\n", "", 0).replace("s_waitcnt vmcnt(12)\n", "")
    s = s.replace(f"s_add_u32 s25, s25, {16*stride}\ns_add_u32 s26", "s_add_u32 s26")
    return s
open("mb_z_rd.s", "w").write(mk("rd", "v9"))
open("mb_z_rdw_lin.s", "w").write(mk("rdw", "v9"))
open("mb_z_rdw_str.s", "w").write(mk("rdw", "v8"))
open("mb_z_rw_lin.s", "w").write(mk("rw", "v9"))
open("mb_z_rw_str.s", "w").write(mk("rw", "v8"))
open("mb_z_r.s", "w").write(mk("r", "v8"))
open("mb_z_w_str.s", "w").write(mk("w", "v8"))
open("mb_z_rdw64_str.s", "w").write(mk("rdw", "v8", "b64"))
```

```python
from gen_mb1 import gen
def rot(s, stride, wrot=False):
    init = f"s_lshr_b32 s25, s2, 3\n"
    if wrot:
        init += "s_lshl_b32 s31, s20, 3\ns_xor_b32 s25, s25, s31\n"
    init += f"s_mul_i32 s25, s25, {16*stride}\n"
    s = s.replace("s_mov_b32 s25, 0  ; soffset", init)
    s = s.replace(f"s_add_u32 s25, s25, {16*stride}", f"s_add_u32 s25, s25, {16*stride}\ns_cmp_ge_u32 s25, {512*stride}\ns_cselect_b32 s25, 0, s25")
    return s
base = gen(NM=0, NT=0, NB=0, DEPTH=12, stride=8192)
open("mb_A.s", "w").write(rot(base, 8192))
open("mb_D_wrot.s", "w").write(rot(base, 8192, True))
s = base
old = s[s.index("v_lshrrev_b32 v3, 4, v2"):s.index("s_mul_i32 s24, s20")]
new = """v_lshlrev_b32 v3, 4, v2
s_and_b32 s22, s2, 7
s_mul_i32 s22, s22, 1024
s_mul_i32 s23, s20, 32768
s_add_u32 s22, s22, s23
v_add_u32 v3, s22, v3
""" + "\n".join(f"v_add_u32 v{10+j}, {j*(8192-1024)}, v3" for j in range(4)) + "\n"
s = s.replace(old, new)
open("mb_B_row.s", "w").write(rot(s, 8192))
s = base.replace("s_and_b32 s22, s2, 7", "s_and_b32 s22, s2, 6\ns_bfe_u32 s23, s2, 0x10003\ns_add_u32 s22, s22, s23")
open("mb_E_half.s", "w").write(rot(s, 8192))
```

```python
from gen_mb1 import gen
def mk(colbase_mul, wave_mul, w3_half):
    s = gen(NM=0, NT=0, NB=0, DEPTH=12, stride=3584)
    old = s[s.index("v_lshrrev_b32 v3, 4, v2"):s.index("s_mul_i32 s24, s20")]
    new = f"""v_lshrrev_b32 v3, 3, v2
v_mul_u32_u24 v3, 3584, v3
v_and_b32 v4, 7, v2
v_lshl_add_u32 v3, v4, 4, v3
s_and_b32 s22, s2, 7
s_min_u32 s22, s22, {7 if colbase_mul == 448 else 6}
s_mul_i32 s22, s22, {colbase_mul}
s_mul_i32 s23, s20, {wave_mul}
s_add_u32 s22, s22, s23
v_add_u32 v10, s22, v3
v_add_u32 v11, {8*3584-1024}, v10
v_add_u32 v12, {(8<<20)-2048}, v10
v_add_u32 v13, {(8<<20)-2048+8*3584-1024}, v10
"""
    if w3_half:
        new += """v_cmp_le_u32 vcc, 4, v4
s_cmp_eq_u32 s20, 3
s_cselect_b64 vcc, vcc, 0
v_mov_b32 v7, 0x7f000000
s_nop 3
v_cndmask_b32 v10, v10, v7, vcc
v_cndmask_b32 v11, v11, v7, vcc
v_cndmask_b32 v12, v12, v7, vcc
v_cndmask_b32 v13, v13, v7, vcc
"""
    s = s.replace(old, new)
    s = s.replace("s_mov_b32 s25, 0  ; soffset", f"s_lshr_b32 s25, s2, 3\ns_mul_i32 s25, s25, {16*3584}\n")
    s = s.replace(f"s_add_u32 s25, s25, {16*3584}", f"s_add_u32 s25, s25, {16*3584}\ns_cmp_ge_u32 s25, {512*3584}\ns_cselect_b32 s25, 0, s25")
    return s
open("mb_gu512.s", "w").write(mk(512, 128, False))
open("mb_gu448_full.s", "w").write(mk(448, 128, False))
open("mb_gu448_half.s", "w").write(mk(448, 128, True))
```
